```python
import torch

def _softmax(x, axis=-1):
    return torch.softmax(x, dim=axis)
def _gelu(x):
    return torch.nn.functional.gelu(x, approximate="tanh")
def _silu(x):
    return torch.nn.functional.silu(x)
def _sigmoid(x):
    return torch.sigmoid(x)
def _layernorm(x, axis=-1, eps=1e-5):
    m = x.mean(dim=axis, keepdim=True)
    v = x.var(dim=axis, keepdim=True, unbiased=False)
    return (x - m) / torch.sqrt(v + eps)
def _scatter_add(tgt, idx, src, axis=0):
    return tgt.clone().index_add_(axis, idx, src)
def _segment_sum(src, seg, n):
    out = torch.zeros((n,) + src.shape[1:], dtype=src.dtype)
    return out.index_add_(0, seg, src)
def _pad(x, pw):
    flat = tuple(v for pair in reversed(pw) for v in pair)
    return torch.nn.functional.pad(x, flat)

kernel_name = 'recurrent_scan__compressed_kv_cla__dense_activation_squared_relu__prompt'

def setup_inputs():

    _w = (lambda a: (lambda t: t.to(torch.bfloat16) if t.is_floating_point() else t)(torch.as_tensor(a)))
    def _A_setup():
        B, H, Sq, Sk, D, M = 1, 16, 2048, 2048, 256, 448
        Dc = 4 * D
        return {
            "x": _w((lambda *s: torch.randn(*s, dtype=torch.bfloat16) * 0.05)(B, Sq, M)),
            "c_kv": _w((lambda *s: torch.randn(*s, dtype=torch.bfloat16) * 0.2)(B, Sk, Dc)),
            "w_q": _w((lambda *s: torch.randn(*s, dtype=torch.bfloat16) * 3.2)(M, H, D) * (M ** -0.5)),
            "w_uk": _w((lambda *s: torch.randn(*s, dtype=torch.bfloat16) * 3.2)(Dc, H, D) * (Dc ** -0.5)),
            "w_uv": _w((lambda *s: torch.randn(*s, dtype=torch.bfloat16) * 0.2)(Dc, H, D) * (Dc ** -0.5)),
            "w_o": _w((lambda *s: torch.randn(*s, dtype=torch.bfloat16) * 0.2)(H, D, M) * ((H * D) ** -0.5)),
        }
    _A_in = _A_setup()

    def _B_setup():
        B, S, D, F = 1, 2048, 448, 1792
        return {
            "x": _w((lambda *s: torch.randn(*s, dtype=torch.bfloat16) * 0.05)(B, S, D)),
            "w1": _w((lambda *s: torch.randn(*s, dtype=torch.bfloat16) * 0.1)(D, F)),
            "b1": _w((lambda *s: torch.randn(*s, dtype=torch.bfloat16) * 0.8)(F)),
            "w2": _w((lambda *s: torch.randn(*s, dtype=torch.bfloat16) * 0.1)(F, D)),
            "b2": _w((lambda *s: torch.randn(*s, dtype=torch.bfloat16) * 6.4)(D)),
        }
    _B_in = _B_setup()

    return {
        "A_x": _A_in["x"],
        "A_c_kv": _A_in["c_kv"],
        "A_w_q": _A_in["w_q"],
        "A_w_uk": _A_in["w_uk"],
        "A_w_uv": _A_in["w_uv"],
        "A_w_o": _A_in["w_o"],
        "B_x": _B_in["x"],
        "B_w1": _B_in["w1"],
        "B_b1": _B_in["b1"],
        "B_w2": _B_in["w2"],
        "B_b2": _B_in["b2"],
    }

def reference(A_x, A_c_kv, A_w_q, A_w_uk, A_w_uv, A_w_o, B_x, B_w1, B_b1, B_w2, B_b2):
    def _A_ref(x, c_kv, w_q, w_uk, w_uv, w_o):
        B, Sq, M = x.shape[0], x.shape[1], x.shape[2]
        Sk = c_kv.shape[1]
        H, D = w_q.shape[1], w_q.shape[2]
        q = torch.einsum("bqm,mhd->bhqd", x, w_q)
        k = torch.einsum("bkc,chd->bhkd", c_kv, w_uk)
        v = torch.einsum("bkc,chd->bhkd", c_kv, w_uv)
        scores = torch.einsum("bhqd,bhkd->bhqk", q, k) * (D ** -0.5)
        off = Sk - Sq
        qi = torch.arange(Sq)[:, None]
        kj = torch.arange(Sk)[None, :]
        cmask = kj <= (qi + off)
        scores = torch.where(cmask[None, None], scores, -1e9)
        p = _softmax(scores, axis=-1)
        ctx = torch.einsum("bhqk,bhkd->bhqd", p, v)
        return torch.einsum("bhqd,hdm->bqm", ctx, w_o)

    def _B_ref(x, w1, b1, w2, b2):
        h = torch.einsum("bsd,df->bsf", x, w1) + b1
        zero = torch.zeros_like(h)
        r = torch.where(h > zero, h, zero)
        h = r * r
        out = torch.einsum("bsf,fd->bsd", h, w2) + b2
        return out

    x = A_x
    xn = _layernorm(x, axis=-1)
    s = _A_ref(xn, A_c_kv, A_w_q, A_w_uk, A_w_uv, A_w_o)
    g = _silu(_B_ref(xn, B_w1, B_b1, B_w2, B_b2))
    return x + s * g
```

```python
import re

REG_RE = re.compile(r'\b([vas])(\d+)\b|\b([vas])\[(\d+):(\d+)\]')

def regs_of(op):
    op = op.strip()
    out = []
    for m in REG_RE.finditer(op):
        if m.group(1):
            out.append(m.group(1) + m.group(2))
        else:
            out += [m.group(3) + str(i) for i in range(int(m.group(4)), int(m.group(5)) + 1)]
    if re.search(r'\bvcc\b', op): out.append('vcc')
    if re.search(r'\bexec\b', op): out.append('exec')
    if re.search(r'\bm0\b', op): out.append('m0')
    return out

TRANS = ('v_exp_f32', 'v_log_f32', 'v_rcp_f32', 'v_rsq_f32', 'v_sqrt_f32', 'v_sin_f32', 'v_cos_f32')

class Ins:
    __slots__ = ('text', 'op', 'kind', 'rd', 'wr', 'srcc', 'ab', 'target', 'tok', 'dpp', 'wide_store', 'states')
    def __init__(self, text, tok=None):
        self.text = text
        self.tok = tok
        self.target = None
        self.srcc = (); self.ab = (); self.dpp = False; self.wide_store = ()
        self.states = 1
        t = text.split(';')[0].strip()
        parts = t.split(None, 1)
        op = parts[0]; self.op = op
        rest = parts[1] if len(parts) > 1 else ''
        ops = [o.strip() for o in rest.split(',')] if rest else []
        rd, wr = [], []
        if op.endswith(':'):
            self.kind = 'label'
        elif op.startswith('@'):
            self.kind = 'pseudo'
        elif op.startswith('.'):
            self.kind = 'directive'
        elif op.startswith('v_mfma'):
            self.kind = 'mfma'
            wr = regs_of(ops[0]); self.ab = regs_of(ops[1]) + regs_of(ops[2]); self.srcc = regs_of(ops[3])
            rd = list(self.ab) + list(self.srcc)
        elif op.startswith('ds_read') or op.startswith('ds_bpermute') or op.startswith('ds_swizzle'):
            self.kind = 'ds'
            wr = regs_of(ops[0]); rd = sum((regs_of(o) for o in ops[1:]), [])
        elif op.startswith('ds_write'):
            self.kind = 'ds'
            rd = sum((regs_of(o) for o in ops), [])
        elif op.startswith('buffer_load') or op.startswith('global_load'):
            self.kind = 'vmem'
            if re.search(r'\blds\b', t):
                rd = sum((regs_of(o) for o in ops), []) + ['m0']
            else:
                wr = regs_of(ops[0]); rd = sum((regs_of(o) for o in ops[1:]), [])
        elif op.startswith('buffer_store') or op.startswith('global_store') or op.startswith('buffer_atomic') or op.startswith('global_atomic'):
            self.kind = 'vmem'
            rd = sum((regs_of(o) for o in ops), [])
            if op.endswith('x4') or op.endswith('x3'):
                self.wide_store = regs_of(ops[0] if op.startswith('buffer') else ops[1])
        elif op.startswith('buffer_inv') or op.startswith('buffer_wbl2'):
            self.kind = 'vmem'
        elif op.startswith('v_'):
            self.kind = 'trans' if op.split('_e')[0] in TRANS or op in TRANS else 'valu'
            if 'row_' in t or 'quad_perm' in t or '_dpp' in op: self.dpp = True
            if op.startswith('v_cmp'):
                wr = regs_of(ops[0]); rd = sum((regs_of(o) for o in ops[1:]), [])
            elif op.startswith('v_permlane'):
                wr = regs_of(ops[0]) + regs_of(ops[1]); rd = list(wr)
            elif op.startswith('v_nop'):
                pass
            else:
                wr = regs_of(ops[0]); rd = sum((regs_of(o) for o in ops[1:]), [])
                if op.startswith('v_fmac') or self.dpp or op.startswith('v_writelane'): rd += wr
                if '_co_' in op:
                    wr += regs_of(ops[1])
        elif op in ('s_branch',) or op.startswith('s_cbranch'):
            self.kind = 'branch'; self.target = ops[0]
            if 'vcc' in op: rd = ['vcc']
            if 'exec' in op: rd = ['exec']
        elif op == 's_endpgm':
            self.kind = 'end'
        elif op == 's_waitcnt':
            self.kind = 'wait'
        elif op == 's_nop':
            self.kind = 'nop'; self.states = int(ops[0], 0) + 1
        elif op in ('s_barrier', 's_setprio', 's_sleep'):
            self.kind = 'salu'
        elif op.startswith('s_load') or op.startswith('s_memtime') or op.startswith('s_memrealtime'):
            self.kind = 'smem'
            wr = regs_of(ops[0]); rd = sum((regs_of(o) for o in ops[1:]), [])
        elif op.startswith('s_cmp') or op.startswith('s_bitcmp'):
            self.kind = 'salu'; rd = sum((regs_of(o) for o in ops), [])
        elif op.startswith('s_'):
            self.kind = 'salu'
            wr = regs_of(ops[0]); rd = sum((regs_of(o) for o in ops[1:]), [])
            if 'saveexec' in op: wr.append('exec'); rd.append('exec')
        else:
            raise ValueError('unknown instruction: ' + text)
        self.rd = frozenset(rd); self.wr = frozenset(wr)

def parse_wait(text):
    vm = re.search(r'vmcnt\((\d+)\)', text); lg = re.search(r'lgkmcnt\((\d+)\)', text)
    return (int(vm.group(1)) if vm else None, int(lg.group(1)) if lg else None)

class Prog:
    def __init__(self, name):
        self.name = name
        self.ins = []
        self._lab = 0
    def __call__(self, text, tok=None):
        for line in text.split('\n'):
            line = line.strip()
            if line: self.ins.append(Ins(line, tok))
    STAMP0 = 80
    stamps_on = False
    def stamp(self, i):
        if self.stamps_on:
            self(f"s_memrealtime s[{self.STAMP0+2*i}:{self.STAMP0+2*i+1}]")
    def stamp_flush(self, n, srd, wave_sreg, off, tv=(1, 2)):
        if not self.stamps_on: return
        self("s_waitcnt lgkmcnt(0)")
        self(f"s_lshl_b32 s3, s2, 2\ns_add_u32 s3, s3, {wave_sreg}\ns_lshl_b32 s3, s3, 6\ns_add_u32 s3, s3, {off}")
        self(f"v_mov_b32 v{tv[0]}, 0")
        for i in range(n):
            self(f"v_mov_b32 v{tv[1]}, s{self.STAMP0+2*i}")
            self(f"buffer_store_dword v{tv[1]}, v{tv[0]}, {srd}, s3 offen offset:{4*i}")
            self("s_nop 1")
    def label(self, base):
        self._lab += 1
        return f"L_{self.name}_{base}_{self._lab}"
    def body(self, mfmas, fill, pre=None):
        for i, m in enumerate(mfmas):
            for x in (pre or {}).get(i, []): self._e(x)
            self(m)
            for x in fill.get(i, []): self._e(x)
    def _e(self, x):
        if isinstance(x, tuple): self(x[0], x[1])
        else: self(x)

    def _cfg(self, ins):
        lab = {i.op[:-1]: k for k, i in enumerate(ins) if i.kind == 'label'}
        succ = []
        for k, i in enumerate(ins):
            if i.kind == 'end': succ.append([])
            elif i.kind == 'branch':
                s = [lab[i.target]]
                if i.op != 's_branch': s.append(k + 1)
                succ.append(s)
            else: succ.append([k + 1] if k + 1 < len(ins) else [])
        return succ

    def insert_waits(self):
        ins = self.ins
        succ = self._cfg(ins)
        n = len(ins)
        instate = [None] * n
        need = [None] * n
        instate[0] = ({}, {})
        work = [0]
        def merge(a, b):
            ch = False; out = []
            for x, y in zip(a, b):
                d = dict(x)
                for r, c in y.items():
                    if r not in d or c < d[r]:
                        d[r] = c; ch = True
                out.append(d)
            return tuple(out), ch
        while work:
            k = work.pop()
            lg, vm = instate[k]
            i = ins[k]
            lg = dict(lg); vm = dict(vm)
            touch = set(i.rd) | set(i.wr)
            if i.kind == 'pseudo':
                a = i.text.split()
                if a[0] == '@need': touch = set(a[1:])
                elif a[0] == '@needlds': touch = set(lg.keys())
                elif a[0] == '@rot':
                    names = a[1:]
                    for j in range(len(names) - 1, 0, -1):
                        vm.pop(names[j], None)
                        if names[j - 1] in vm: vm[names[j]] = vm[names[j - 1]]
                    vm.pop(names[0], None)
            wl = [lg[r] for r in touch if r in lg]
            wv = [vm[r] for r in touch if r in vm]
            nl = min(min(wl), 15) if wl else None
            nv = min(min(wv), 63) if wv else None
            old = need[k] or (None, None)
            def mn(a, b): return b if a is None else (a if b is None else min(a, b))
            need[k] = (mn(old[0], nv), mn(old[1], nl))
            nv, nl = need[k]
            if i.kind == 'wait':
                v2, l2 = parse_wait(i.text); nv = mn(nv, v2); nl = mn(nl, l2)
            if nl is not None: lg = {r: c for r, c in lg.items() if c < nl} if nl > 0 else {}
            if nv is not None: vm = {r: c for r, c in vm.items() if c < nv}
            if i.kind == 'ds':
                lg = {r: c + 1 for r, c in lg.items()}
                for r in i.wr: lg[r] = 0
                if not i.wr: lg['@dsw'] = 0
            elif i.kind == 'smem':
                lg = {r: -100000 for r in lg}
                for r in i.wr: lg[r] = -100000
                lg['@smem'] = -100000
            elif i.kind == 'vmem':
                vm = {r: c + 1 for r, c in vm.items()}
                for r in i.wr: vm[r] = 0
                if i.tok: vm[i.tok] = 0
            if '@smem' in lg:
                lg = {r: -100000 for r in lg}
            for s in succ[k]:
                if instate[s] is None:
                    instate[s] = (lg, vm); work.append(s)
                else:
                    m, ch = merge(instate[s], (lg, vm))
                    if ch: instate[s] = m; work.append(s)
        out = []
        for k, i in enumerate(ins):
            if need[k] and (need[k][0] is not None or need[k][1] is not None):
                p = []
                if need[k][0] is not None: p.append(f"vmcnt({max(need[k][0],0)})")
                if need[k][1] is not None: p.append(f"lgkmcnt({max(need[k][1],0)})")
                w = Ins("s_waitcnt " + " ".join(p))
                if out and out[-1].kind == 'wait':
                    v1, l1 = parse_wait(out[-1].text); v2, l2 = parse_wait(w.text)
                    mn = lambda a, b: b if a is None else (a if b is None else min(a, b))
                    v, l = mn(v1, v2), mn(l1, l2)
                    p = ([f"vmcnt({v})"] if v is not None else []) + ([f"lgkmcnt({l})"] if l is not None else [])
                    out[-1] = Ins("s_waitcnt " + " ".join(p))
                else:
                    out.append(w)
            if i.kind != 'pseudo': out.append(i)
        self.ins = out

    @staticmethod
    def _req(p, c):
        r = 0
        isv = lambda x: x.kind in ('valu', 'trans')
        if p.kind == 'mfma':
            big = '32x32' in p.op
            D = p.wr
            if c.kind == 'mfma':
                if D & set(c.ab): r = max(r, 12 if big else 8)
                sc = set(c.srcc)
                if D & sc and (sc != D or c.op != p.op): r = max(r, 10 if big else 6)
                if D & c.wr and not (D & sc): r = max(r, 10 if big else 6)
            elif isv(c) or c.kind in ('ds', 'vmem'):
                if D & (c.rd | c.wr): r = max(r, 12 if big else 8)
            if isv(c) and set(p.srcc) & c.wr: r = max(r, 7 if big else 3)
        if isv(p):
            vw = {x for x in p.wr if x[0] in 'va' and x != 'vcc'}
            sw = {x for x in p.wr if x[0] == 's' or x == 'vcc'}
            if c.kind == 'mfma' and vw & c.rd: r = max(r, 2)
            if c.kind == 'mfma' and 'exec' in p.wr: r = max(r, 4)
            if isv(c):
                if p.kind == 'trans' and vw & c.rd: r = max(r, 1)
                if (c.dpp or c.op.startswith('v_permlane')) and vw & c.rd: r = max(r, 2)
                if (c.op.startswith('v_readlane') or c.op.startswith('v_readfirstlane')) and vw & c.rd: r = max(r, 1)
                if sw & c.rd: r = max(r, 4 if c.op.startswith(('v_readlane', 'v_writelane')) else 2)
                if 'exec' in p.wr: r = max(r, 5)
            if p.kind == 'trans' and c.kind in ('ds', 'vmem') and vw & c.rd: r = max(r, 1)
            if c.kind == 'vmem' and sw & c.rd: r = max(r, 5)
            if c.kind in ('salu', 'branch', 'smem') and sw & c.rd: r = max(r, 1)
        if p.kind == 'salu':
            if 'm0' in p.wr and c.kind in ('vmem', 'ds') and 'm0' in c.rd: r = max(r, 1)
        if p.wide_store and set(p.wide_store) & c.wr: r = max(r, 2)
        return r

    def insert_nops(self):
        changed = True
        while changed:
            changed = False
            ins = self.ins
            succ = self._cfg(ins)
            pred = [[] for _ in ins]
            for k, s in enumerate(succ):
                for x in s: pred[x].append(k)
            out = []
            for k, c in enumerate(ins):
                if c.kind in ('label', 'directive', 'wait', 'nop', 'end'):
                    out.append(c); continue
                short = 0
                stack = [(p, 0) for p in pred[k]]
                seen = {}
                while stack:
                    j, d = stack.pop()
                    if d >= 12: continue
                    if j in seen and seen[j] <= d: continue
                    seen[j] = d
                    p = ins[j]
                    if p.kind in ('label', 'directive'):
                        nd = d
                    else:
                        short = max(short, self._req(p, c) - d)
                        nd = d + p.states
                    for q in pred[j]: stack.append((q, nd))
                if short > 0:
                    out.append(Ins(f"s_nop {short - 1}")); changed = True
                    out.append(c)
                    out += ins[k + 1:]
                    break
                out.append(c)
            self.ins = out

    def insert_nops_fast(self):
        ins = self.ins
        out = []
        for c in ins:
            if c.kind not in ('label', 'directive', 'wait', 'nop', 'end'):
                d = 0; short = 0
                for p in reversed(out):
                    if d >= 12: break
                    if p.kind in ('label', 'directive'): continue
                    if p.kind == 'end' or p.op == 's_branch': break
                    short = max(short, self._req(p, c) - d)
                    d += p.states
                if short > 0: out.append(Ins(f"s_nop {short - 1}"))
            out.append(c)
        self.ins = out
        self.insert_nops()

    def finish(self):
        self.insert_waits()
        self.insert_nops_fast()
        hdr = f".globl {self.name}\n.p2align 8\n.type {self.name},@function\n{self.name}:\n"
        return hdr + "\n".join(("" if i.kind in ('label',) else "  ") + i.text for i in self.ins) + "\n"

def desc(name, vg=512, acc=256, sg=102):
    return f""".p2align 6
.amdhsa_kernel {name}
  .amdhsa_next_free_vgpr {vg}
  .amdhsa_next_free_sgpr {sg}
  .amdhsa_accum_offset {acc}
  .amdhsa_group_segment_fixed_size 0
  .amdhsa_kernarg_size 112
  .amdhsa_user_sgpr_count 2
  .amdhsa_user_sgpr_kernarg_segment_ptr 1
  .amdhsa_system_sgpr_workgroup_id_x 1
.end_amdhsa_kernel
"""

INF = 10**9
class Sched:
    def __init__(self, p, budget=8):
        self.p = p; self.mf = []; self.streams = []; self.pre = {}; self.budget = budget
    def stream(self, ops, e=0, d=INF):
        st = []
        for o in ops:
            if isinstance(o, str): o = dict(t=o)
            elif isinstance(o, tuple): o = dict(t=o[0], tok=o[1])
            o = dict(o); o.setdefault('e', e); o.setdefault('d', d); o.setdefault('tok', None)
            c = 0
            for line in o['t'].split('\n'):
                k = Ins(line).kind
                c += 0 if k in ('label', 'pseudo') else (8 if k == 'trans' else 4)
            o['c'] = c
            st.append(o)
        for k in range(len(st) - 1, -1, -1):
            st[k]['hard'] = min(st[k]['d'], st[k + 1]['hard']) if k + 1 < len(st) else st[k]['d']
            st[k]['eff'] = min(st[k]['d'], st[k + 1]['eff'] - st[k + 1]['c'] / 8.0) if k + 1 < len(st) else st[k]['d']
        self.streams.append(st)
    def emit(self, flush=True):
        p = self.p; S = self.streams
        n = len(self.mf)
        over = 0
        def force(idx):
            nonlocal over
            c = 0
            while True:
                cand = [s for s in S if s and s[0]['hard'] <= idx]
                if not cand: break
                s = min(cand, key=lambda s: s[0]['eff'])
                o = s.pop(0); p(o['t'], o['tok']); c += o['c']
            return c
        for g in range(n):
            over += force(g)
            for x in self.pre.get(g, []): p._e(x)
            p(self.mf[g])
            b = self.budget - 4 * sum(1 for x in self.pre.get(g + 1, []) if not (x if isinstance(x, str) else x[0]).startswith('@rot'))
            while b > 0:
                cand = [s for s in S if s and s[0]['e'] <= g and (s[0]['c'] <= b or b == self.budget)]
                if not cand: break
                s = min(cand, key=lambda s: s[0]['eff'])
                o = s.pop(0); p(o['t'], o['tok']); b -= o['c']
        left = 0
        if flush:
            left = force(INF)
        self.over = over; self.left = left
        return over, left
```

```python
from asmlib import *
from layout import *

def rr(f, b, n=4): return f"{f}[{b}:{b+n-1}]"

def bf16r(p, dst, src):
    p(f"v_cvt_pk_bf16_f32 {dst}, {src}, {src}")
    p(f"v_and_b32 {dst}, 0xffff0000, {dst}")

def wave_sum(p, regs):
    for m in ("row_shr:1 row_mask:0xf bank_mask:0xf bound_ctrl:0", "row_shr:2 row_mask:0xf bank_mask:0xf bound_ctrl:0",
              "row_shr:4 row_mask:0xf bank_mask:0xf bound_ctrl:0", "row_shr:8 row_mask:0xf bank_mask:0xf bound_ctrl:0",
              "row_bcast:15 row_mask:0xa bank_mask:0xf", "row_bcast:31 row_mask:0xc bank_mask:0xf"):
        for r in regs:
            p(f"v_add_f32_dpp {r}, {r}, {r} {m}")

def gen_k1(name="k1_kernel", dma_flags="", st_flags="", stamps=False):
    p = Prog(name); p.stamps_on = stamps
    VC, VW, AC, AW, VST = 4, 8, 12, 16, 32
    CR, BS = 36, 64
    def cring(t, ks): return CR + ((t & 1) * 2 + ks) * 4
    def bset(s, b, ks): return BS + ((s * 8 + b) * 2 + ks) * 4
    def acc(a, b): return (a * 8 + b) * 4
    end = p.label("end")
    p(f"s_cmp_ge_u32 s2, 256\ns_cbranch_scc1 {end}")
    p.stamp(0)
    p(f"s_load_dwordx4 s[24:27], s[0:1], {A_X}")
    p(f"s_load_dwordx4 s[28:31], s[0:1], {A_WUK}")
    p(f"s_load_dwordx2 s[12:13], s[0:1], {WS}")
    p("v_lshrrev_b32 v1, 6, v0\nv_and_b32 v2, 63, v0")
    p("v_readfirstlane_b32 s20, v1")
    p("s_and_b32 s21, s2, 7\ns_lshr_b32 s22, s2, 3")
    p("s_and_b32 s23, s22, 1\ns_lshl_b32 s21, s21, 1\ns_add_u32 s21, s21, s23")
    p("s_lshr_b32 s23, s22, 1\ns_and_b32 s23, s23, 1")
    p("s_lshr_b32 s22, s22, 2")
    p("s_waitcnt lgkmcnt(0)")
    p("s_mov_b32 s4, s26\ns_mov_b32 s5, s27\ns_mov_b32 s6, 0x400000\ns_mov_b32 s7, 0x20000")
    p("s_cmp_eq_u32 s23, 0\ns_cselect_b32 s8, s28, s30\ns_cselect_b32 s9, s29, s31\ns_mov_b32 s10, 0x800000\ns_mov_b32 s11, 0x20000")
    p(f"s_mov_b32 s14, {WS_SIZE}\ns_mov_b32 s15, 0x20000")
    p("s_mov_b32 s16, s24\ns_mov_b32 s17, s25\ns_mov_b32 s18, 1835008\ns_mov_b32 s19, 0x20000")
    p("s_lshl_b32 s32, s2, 3\ns_lshl_b32 s33, s20, 1\ns_add_u32 s32, s32, s33")
    p("s_mul_i32 s33, s32, 896")
    p("v_lshlrev_b32 v32, 4, v2")
    p("v_mov_b32 v3, 0x7fffff00\nv_cmp_gt_u32 vcc, 56, v2\nv_cndmask_b32 v3, v3, v32, vcc")
    p("buffer_load_dwordx4 v[192:195], v3, s[16:19], s33 offen")
    p("buffer_load_dwordx4 v[196:199], v3, s[16:19], s33 offen offset:896")
    p("s_lshl_b32 s34, s22, 8\ns_lshr_b32 s35, s20, 1\ns_lshl_b32 s35, s35, 7\ns_add_u32 s34, s34, s35")
    p("s_and_b32 s36, s20, 1\ns_lshl_b32 s35, s36, 5\ns_add_u32 s34, s34, s35")
    p("v_lshrrev_b32 v1, 3, v2\nv_add_u32 v1, s34, v1\nv_lshlrev_b32 v1, 11, v1")
    p("v_and_b32 v3, 7, v2\nv_lshrrev_b32 v33, 4, v2")
    for i in range(4):
        p(f"v_add_u32 v34, {4*i}, v33\nv_and_b32 v34, 7, v34\nv_xor_b32 v34, v34, v3\nv_lshlrev_b32 v34, 4, v34")
        p(f"v_add_u32 v34, v34, v1\nv_add_u32 v{VC+i}, {i*(8*2048-1024)}, v34")
    p("v_lshrrev_b32 v1, 5, v2\nv_and_b32 v3, 31, v2")
    p("s_lshl_b32 s34, s20, 16\ns_lshl_b32 s35, s21, 9\ns_add_u32 s34, s34, s35")
    p("s_lshl_b32 s35, s36, 2")
    for i in range(4):
        p(f"v_add_u32 v34, {2*i}, v1\nv_and_b32 v34, 3, v34\nv_add_u32 v34, s35, v34\nv_lshlrev_b32 v34, 1, v34\nv_xor_b32 v34, v34, v3\nv_lshlrev_b32 v34, 4, v34")
        p(f"v_lshlrev_b32 v35, 13, v1\nv_add_u32 v34, v34, v35\nv_add_u32 v34, s34, v34\nv_add_u32 v{VW+i}, {i*(2*8192-1024)}, v34")
    p("s_lshl_b32 s37, s20, 12")
    def dma(kind, ldsbase, soff, tok):
        o = [f"s_add_u32 m0, s37, {ldsbase}"]
        for i in range(4):
            v = (VC if kind == 'c' else VW) + i
            srd = "s[4:7]" if kind == 'c' else "s[8:11]"
            o.append((f"buffer_load_dwordx4 v{v}, {srd}, {soff} offen offset:{i*1024} {dma_flags} lds", tok))
        return o
    p("s_mov_b32 s40, 0\ns_mov_b32 s41, 131072\ns_mov_b32 s42, 262144")
    for x in dma('w', 98304, "0", 'p') + dma('w', 114688, "s42", 'p'): p._e(x)
    p("s_mov_b32 s42, 524288")
    for x in dma('c', 0, "s40", 'p') + dma('w', 16384, "s42", 'p'): p._e(x)
    p("s_add_u32 s42, s42, 262144")
    for x in dma('c', 32768, "s41", 'd2') + dma('w', 32768 + 16384, "s42", 'd2'): p._e(x)
    p("s_add_u32 s42, s42, 262144\ns_add_u32 s40, s40, 128\ns_add_u32 s41, s41, 128")
    for x in dma('c', 65536, "s40", 'd1') + dma('w', 65536 + 16384, "s42", 'd1'): p._e(x)
    p("s_add_u32 s42, s42, 262144")
    p("v_and_b32 v1, 15, v2")
    p("s_lshr_b32 s34, s20, 1\ns_lshl_b32 s34, s34, 13")
    p("v_lshlrev_b32 v3, 7, v1\nv_add_u32 v3, s34, v3\nv_lshrrev_b32 v34, 1, v1")
    for ks in range(2):
        p(f"v_add_u32 v35, {4*ks}, v33\nv_xor_b32 v35, v35, v34\nv_lshlrev_b32 v35, 4, v35\nv_add_u32 v{AC+ks}, v35, v3\nv_add_u32 v{AC+2+ks}, 0x10000, v{AC+ks}")
    p("v_lshrrev_b32 v34, 2, v1\nv_lshlrev_b32 v3, 3, v33\nv_add_u32 v3, v3, v34\nv_lshlrev_b32 v3, 9, v3")
    p("v_and_b32 v35, 3, v1\nv_lshlrev_b32 v35, 3, v35\nv_add_u32 v3, v3, v35")
    p("s_lshl_b32 s34, s36, 8\ns_add_u32 s34, s34, 16384\nv_add_u32 v3, s34, v3")
    p("v_and_b32 v35, 1, v33\nv_lshlrev_b32 v35, 2, v35\nv_add_u32 v34, v34, v35")
    for b in range(8):
        p(f"v_xor_b32 v35, {b}, v34\nv_lshlrev_b32 v35, 5, v35\nv_add_u32 v{AW+b}, v35, v3\nv_add_u32 v{AW+8+b}, 0x10000, v{AW+b}")
    for i in range(256): p(f"v_accvgpr_write_b32 a{i}, 0")
    for rw in range(2):
        for j in range(4):
            s = 192 + rw * 4 + j; d = 200 + rw * 8 + 2 * j
            p(f"v_lshlrev_b32 v{d}, 16, v{s}\nv_and_b32 v{d+1}, 0xffff0000, v{s}")
    for rw in range(2):
        d = 200 + rw * 8; a = 216 + rw
        p(f"v_add_f32 v{a}, v{d}, v{d+1}")
        for j in range(2, 8): p(f"v_add_f32 v{a}, v{a}, v{d+j}")
    wave_sum(p, ["v216", "v217"])
    p("v_readlane_b32 s44, v216, 63\nv_readlane_b32 s45, v217, 63")
    p("v_mov_b32 v218, 0x3b124925")
    p("v_mul_f32 v216, s44, v218\nv_mul_f32 v217, s45, v218")
    for rw in range(2):
        d = 200 + rw * 8; a = 220 + rw
        for j in range(8):
            p(f"v_sub_f32 v222, v{d+j}, v{216+rw}")
            if j == 0: p(f"v_mul_f32 v{a}, v222, v222")
            else: p(f"v_fmac_f32 v{a}, v222, v222")
        p(f"v_cndmask_b32 v{a}, 0, v{a}, vcc")
    wave_sum(p, ["v220", "v221"])
    p("v_readlane_b32 s44, v220, 63\nv_readlane_b32 s45, v221, 63")
    p("v_mul_f32 v220, s44, v218\nv_mul_f32 v221, s45, v218")
    for rw in range(2):
        m, v = f"v{216+rw}", f"v{220+rw}"
        bf16r(p, m, m); bf16r(p, v, v)
        p(f"v_add_f32 {v}, 0x3727c5ac, {v}"); bf16r(p, v, v)
        p(f"v_sqrt_f32 {v}, {v}"); bf16r(p, v, v)
        p(f"v_rcp_f32 {v}, {v}")
        d = 200 + rw * 8
        for j in range(0, 8, 2):
            p(f"v_sub_f32 v{d+j}, v{d+j}, {m}\nv_sub_f32 v{d+j+1}, v{d+j+1}, {m}")
            p(f"v_cvt_pk_bf16_f32 v222, v{d+j}, v{d+j+1}")
            p(f"v_lshlrev_b32 v{d+j}, 16, v222\nv_and_b32 v{d+j+1}, 0xffff0000, v222")
            p(f"v_mul_f32 v{d+j}, v{d+j}, {v}\nv_mul_f32 v{d+j+1}, v{d+j+1}, {v}")
            p(f"v_cvt_pk_bf16_f32 v{192+rw*4+j//2}, v{d+j}, v{d+j+1}")
    p("s_lshr_b32 s33, s32, 4\ns_mul_i32 s33, s33, 14336\ns_and_b32 s34, s32, 15\ns_lshl_b32 s34, s34, 4\ns_add_u32 s33, s33, s34")
    p(f"s_add_u32 s33, s33, {XN_OFF}")
    p("v_lshrrev_b32 v222, 2, v2\nv_lshlrev_b32 v222, 10, v222\nv_and_b32 v223, 1, v2\nv_lshlrev_b32 v223, 9, v223\nv_add_u32 v222, v222, v223")
    p("v_and_b32 v223, 2, v2\nv_lshlrev_b32 v223, 2, v223\nv_add_u32 v222, v222, v223")
    p("v_mov_b32 v223, 0x7fffff00\nv_cndmask_b32 v222, v223, v222, vcc")
    for rw in range(2):
        p(f"buffer_store_dwordx2 v[{192+rw*4}:{193+rw*4}], v222, s[12:15], s33 offen offset:{rw*16} {st_flags}")
        p(f"buffer_store_dwordx2 v[{194+rw*4}:{195+rw*4}], v222, s[12:15], s33 offen offset:{rw*16+256} {st_flags}")
    p.stamp(1)
    p("@need p\ns_barrier")
    p.stamp(2)
    for ks in range(2):
        for b in range(8):
            r = bset(0, b, ks)
            for h in range(2):
                p(f"ds_read_b64_tr_b16 v[{r+2*h}:{r+2*h+1}], v{AW+8+b} offset:{16384 + ks*16384 + h*2048}")
    for ks in range(2):
        p(f"ds_read_b128 {rr('v', cring(0, ks))}, v{AC+ks}")
    p("@needlds\ns_barrier")
    for x in dma('c', 98304, "s41", 'd0') + dma('w', 98304 + 16384, "s42", 'd0'): p._e(x)
    p("s_add_u32 s42, s42, 262144\ns_add_u32 s40, s40, 128\ns_add_u32 s41, s41, 128")
    p("s_mov_b32 s43, 8")
    p.stamp(3)
    if stamps: p("s_waitcnt lgkmcnt(0)")
    lv = p.label("loopV"); lk = p.label("loopK"); ev = p.label("epiV")
    p(f"s_cmp_eq_u32 s23, 1\ns_cbranch_scc1 {lv}")
    for kind in (0, 1):
        lab = lk if kind == 0 else lv
        p(".p2align 6"); p(f"{lab}:")
        for j in range(4):
            tp, half, slot = j >> 1, j & 1, j
            mf = []
            for a1 in range(4):
                for b in range(8):
                    for ks in range(2):
                        c = rr('v', cring(a1, ks)); w = rr('v', bset(tp, b, ks)); d = rr('a', acc(4 * half + a1, b))
                        mf.append(f"{MFMA} {d}, {w}, {c}, {d}" if kind == 0 else f"{MFMA} {d}, {c}, {w}, {d}")
            fill = {}; pre = {}
            def add(g, x): fill.setdefault(g, []).append(x)
            def cread(sl, a1, ks):
                return f"ds_read_b128 {rr('v', cring(a1, ks))}, v{AC + 2*(sl>>1) + ks} offset:{(sl&1)*32768 + a1*2048}"
            for a1 in range(1, 4):
                for ks in range(2): add((a1 - 1) * 16 + ks, cread(slot, a1, ks))
            n = 0
            for b in range(8):
                r = bset(tp ^ 1, b, half)
                for h in range(2):
                    add(2 + n * 2 if n < 7 else 4 + n * 2, f"ds_read_b64_tr_b16 v[{r+2*h}:{r+2*h+1}], v{AW + 8*(slot>>1) + b} offset:{(slot&1)*32768 + h*2048}")
                    n += 1
            pre[48] = ["@rot d0 d1 d2 d3", "@need d3", "@needlds", "s_barrier"]
            for ks in range(2): add(48 + ks, cread((slot + 1) & 3, 0, ks))
            d = dma('c', slot * 32768, "s40" if half == 0 else "s41", 'd0') + dma('w', slot * 32768 + 16384, "s42", 'd0')
            g = 50
            for x in d:
                add(g, x); g += 1
            add(60, "s_add_u32 s42, s42, 262144")
            if half == 1: add(61, "s_add_u32 s40, s40, 128"); add(61, "s_add_u32 s41, s41, 128")
            if j == 0:
                add(20, "s_sub_u32 s43, s43, 1"); add(21, "s_cmp_eq_u32 s43, 0"); add(21, "s_cselect_b32 s6, 0, s6")
            if j == 3:
                add(62, "s_cmp_lg_u32 s43, 0")
            p.body(mf, fill, pre)
        p(f"s_cbranch_scc1 {lab}")
        p.stamp(4)
        p("s_lshl_b32 s44, s21, 21\ns_lshl_b32 s45, s22, 18\ns_add_u32 s44, s44, s45\ns_lshr_b32 s45, s20, 1\ns_lshl_b32 s45, s45, 17\ns_add_u32 s44, s44, s45")
        if kind == 0: p("s_lshl_b32 s45, s36, 12\ns_add_u32 s44, s44, s45")
        else: p("s_lshl_b32 s45, s36, 13\ns_add_u32 s44, s44, s45\ns_add_u32 s44, s44, 16384")
        n = 0
        for o in range(8):
            if kind == 0: so = (o >> 1) * 32768 + (o & 1) * 8192
            else: so = (o >> 1) * 32768 + (o & 1) * 4096
            p(f"s_add_u32 s45, s44, {so}")
            for q in range(4):
                if kind == 0: t0, t1 = acc(o, 2 * q), acc(o, 2 * q + 1)
                else: t0, t1 = acc(2 * (o >> 1), (o & 1) * 4 + q), acc(2 * (o >> 1) + 1, (o & 1) * 4 + q)
                tb = 64 + (n % 8) * 12; n += 1
                for i in range(4): p(f"v_accvgpr_read_b32 v{tb+i}, a{t0+i}")
                for i in range(4): p(f"v_accvgpr_read_b32 v{tb+4+i}, a{t1+i}")
                for i in range(4): p(f"v_cvt_pk_bf16_f32 v{tb+8+i}, v{tb+2*i}, v{tb+2*i+1}")
                p(f"buffer_store_dwordx4 v[{tb+8}:{tb+11}], v{VST}, s[12:15], s45 offen offset:{q*1024} {st_flags}")
        p.stamp(5)
        if stamps: p("s_waitcnt vmcnt(0)")
        p.stamp(6)
        p.stamp_flush(7, "s[12:15]", "s20", STAMP_OFF)
        p("s_endpgm")
    p(f"{end}:")
    p("s_endpgm")
    return p.finish(), desc(name)
```

```python
from asmlib import *
from layout import *
import sched_tab, struct

def f2u(x): return struct.unpack('<I', struct.pack('<f', x))[0]
def rr(f, b, n=4): return f"{f}[{b}:{b+n-1}]"

L16, VROW, VCH, VOFF, LB, AW, AK, NEG, VSTAT, VBIAS = 1, 2, 3, 4, 12, 16, 20, 21, 22, 23
T0 = 24
def S(kt, qt): return 32 + (kt * 2 + qt) * 4
def CI(kt, qt): return 48 + (kt * 2 + qt) * 4
def P(qt): return 64 + 4 * qt
def E(qt, k): return 72 + 8 * qt + k
def LS(qt, a): return 88 + 2 * qt + a
def M(qt): return 92 + qt
def MX(qt): return 94 + qt
BIAS = 96
def O(dt, qt): return 128 + (qt * 16 + dt) * 4
def OP(qt, s): return 128 + qt * 64 + 4 * s
def IA(G, nt, qt): return (224 if G % 2 == 0 else 160) + (nt * 2 + qt) * 4
def OA(mt, qt): return 160 + (mt * 2 + qt) * 4
def QF(qt, s): return (qt * 8 + s) * 4
def XF(kh, qt, s): return 64 + ((kh * 2 + qt) * 7 + s) * 4
def RING(t, s): return 176 + (t & 1) * 32 + 4 * s
def KF(kt, s): return (176 if kt == 0 else 64) + 4 * s
def VF(dt): return 96 + 4 * dt
sW, sW8K, sOFF, sSTEP, sTOG, sSLOT, sNEXT = 24, 25, 26, 27, 28, 29, 30
D0, D1 = 32, 36
sHS, sTILE, sB, sREM, sDIAG, sPART, sSTAT, sT, sC = 52, 53, 54, 55, 56, 57, 58, 59, 31
sMASK = 60
nHS, nTILE, sXN, sX, sY, sZ = 68, 69, 70, 71, 72, 73
sXCD = 74
THRESH = 16.0

def gen_k2(name="k2_kernel", dma_flags="", st_flags="", stamps=False):
    p = Prog(name); p.stamps_on = stamps
    end = p.label("end")
    ool = []
    def dma_ops(tok='d0'):
        o = []
        for i in range(8):
            if i % 4 == 0:
                o.append(f"s_add_u32 m0, s{sSLOT}, s{sW8K}" if i == 0 else "s_add_u32 m0, m0, 4096")
            o.append((f"buffer_load_dwordx4 v{VOFF+i}, s[4:7], s{sOFF} offen offset:{(i%4)*1024} {dma_flags} lds", tok))
        o += [f"s_add_u32 s{sOFF}, s{sOFF}, s{sSTEP}", f"s_xor_b32 s{sSTEP}, s{sSTEP}, s{sTOG}",
              f"s_mov_b32 s{sSLOT}, s{sNEXT}", f"s_add_u32 s{sNEXT}, s{sNEXT}, 0x8000", f"s_and_b32 s{sNEXT}, s{sNEXT}, 0x1ffff"]
        return o
    BAR = ["@rot d0 d1 d2 d3", "@need d3", "@needlds", "s_barrier"]
    def w_voffs(stride_s, last_oob):
        o = [f"v_mad_u32_u24 v{VOFF}, v{VROW}, s{stride_s}, v{VCH}",
             f"s_lshl_b32 s{sX}, s{stride_s}, 5", f"s_add_u32 s{sY}, s{sX}, 3072", f"s_sub_u32 s{sX}, s{sX}, 1024"]
        for i in range(1, 8):
            if i == 7 and last_oob: o.append(f"v_mov_b32 v{VOFF+7}, 0x7fffff00")
            else: o.append(f"v_add_u32 v{VOFF+i}, s{sY if i == 4 else sX}, v{VOFF+i-1}")
        return o
    def setup_next_desc(D):
        return [
            f"s_lshl_b32 s{sX}, s{sXCD}, 1", f"s_add_u32 s{sX}, s{sX}, s{D+1}",
            f"s_mul_i32 s{sY}, s{sXCD}, 14", f"s_add_u32 s{sY}, s{sY}, s{D+1}",
            f"s_lshr_b32 s{sZ}, s{sY}, 4", f"s_and_b32 s{sY}, s{sY}, 15",
            f"s_and_b32 s{nTILE}, s{D+2}, 255",
            f"s_cmp_eq_u32 s{D}, 1\ns_cselect_b32 s{nHS}, s{sZ}, s{sX}\ns_cselect_b32 s{nTILE}, s{sY}, s{nTILE}",
            f"s_lshl_b32 s{sX}, s{nTILE}, 2", f"s_add_u32 s{sX}, s{sX}, s{sW}", f"s_mul_i32 s{sXN}, s{sX}, 28672", f"s_add_u32 s{sXN}, s{sXN}, {XN_OFF}"]
    def setup_win(D):
        return [
            f"s_cmp_eq_u32 s{D}, 1\ns_cselect_b32 s4, s20, s16\ns_cselect_b32 s5, s21, s17\ns_cselect_b32 s6, 1605632, s49\ns_cselect_b32 s{sZ}, 3584, s50",
            f"s_cmp_eq_u32 s{D}, 2\ns_cselect_b32 s6, 0, s6",
            f"s_lshl_b32 s{sOFF}, s{nHS}, 9", f"s_mul_i32 s{sSTEP}, s{sZ}, 224", f"s_sub_u32 s{sTOG}, 128, s{sSTEP}", f"s_xor_b32 s{sTOG}, s{sTOG}, s{sSTEP}",
            ] + w_voffs(sZ, True)
    def setup_wout(ffn):
        b = 22 if ffn else 18
        return [f"s_mov_b32 s4, s{b}", f"s_mov_b32 s5, s{b+1}", f"s_mov_b32 s6, {1605632 if ffn else 3670016}",
                f"s_mul_i32 s{sOFF}, s{sHS}, 229376", f"s_mov_b32 s{sSTEP}, 128", f"s_mov_b32 s{sTOG}, 0", f"s_mov_b32 s{sZ}, 896"] + w_voffs(sZ, False)
    def setup_kv():
        o = ["s_mov_b32 s4, s8", "s_mov_b32 s5, s9", "s_mov_b32 s6, s10",
             f"s_lshl_b32 s{sOFF}, s{sHS}, 21", f"s_lshl_b32 s{sX}, s{sB}, 15", f"s_add_u32 s{sOFF}, s{sOFF}, s{sX}",
             f"s_mov_b32 s{sSTEP}, 0x8000", f"s_mov_b32 s{sTOG}, 0", f"v_add_u32 v{VOFF}, s{sW8K}, v{L16}", f"v_add_u32 v{VOFF+4}, 0x1000, v{VOFF}"]
        for i in (1, 2, 3): o += [f"v_mov_b32 v{VOFF+i}, v{VOFF}", f"v_mov_b32 v{VOFF+4+i}, v{VOFF+4}"]
        return o
    def xn_loads(grp):
        o = [f"s_add_u32 s78, s{sXN}, {grp*4096}"]
        for k in range(4):
            n = grp * 4 + k; qt, s = n // 14, n % 14
            o.append(f"buffer_load_dwordx4 {rr('a', XF(s // 7, qt, s % 7))}, v{L16}, s[8:11], s78 offen offset:{k*1024}")
        if grp < 4:
            o.append(f"s_lshl_b32 s79, s{nHS}, 9")
            for nt in range(grp * 4, grp * 4 + 4):
                o.append(f"buffer_load_dwordx2 v[{BIAS+2*nt}:{BIAS+2*nt+1}], v{VBIAS}, s[12:15], s79 offen offset:{nt*32}")
        return o
    def w_reads(t, ns):
        o = []
        for s in range(ns):
            r = RING(t, s)
            for h in range(2):
                o.append(f"ds_read_b64_tr_b16 a[{r+2*h}:{r+2*h+1}], v{AW+(t&3)} offset:{h*16384 + s*1024}")
        return o
    def aw_update(): return [f"v_add_u32 v{AW+i}, s{sNEXT}, v{LB+i}" for i in range(4)]
    def k_reads():
        return [f"ds_read_b128 {rr('a', KF(kt, s))}, v{AK} offset:{(kt*8+s)*1024}" for kt in range(2) for s in range(8)]
    def v_reads():
        return [f"ds_read_b128 {rr('a', VF(dt))}, v{AK} offset:{16384 + dt*1024}" for dt in range(16)]

    p(f"s_cmp_ge_u32 s2, 256\ns_cbranch_scc1 {end}")
    p.stamp(0)
    p(f"s_load_dwordx2 s[16:17], s[0:1], {A_WQ}\ns_load_dwordx2 s[18:19], s[0:1], {A_WO}\ns_load_dwordx2 s[20:21], s[0:1], {B_W1}")
    p(f"s_load_dwordx2 s[22:23], s[0:1], {B_W2}\ns_load_dwordx2 s[12:13], s[0:1], {B_B1}\ns_load_dwordx2 s[8:9], s[0:1], {WS}")
    p(f"s_getpc_b64 s[76:77]")
    p(f"L_{name}_pc:")
    p(f"s_add_u32 s78, s76, {name}_tab-L_{name}_pc\ns_addc_u32 s79, s77, 0")
    p("s_lshr_b32 s3, s2, 3\ns_lshl_b32 s3, s3, 6\ns_add_u32 s78, s78, s3\ns_addc_u32 s79, s79, 0")
    p("s_load_dwordx16 s[32:47], s[78:79], 0")
    p(f"s_and_b32 s{sXCD}, s2, 7")
    p(f"v_lshrrev_b32 v{T0}, 6, v0\nv_and_b32 v{T0+1}, 63, v0")
    p(f"v_readfirstlane_b32 s{sW}, v{T0}")
    p(f"v_lshlrev_b32 v{L16}, 4, v{T0+1}")
    p(f"v_lshlrev_b32 v{T0+2}, 7, v0")
    p(f"s_mov_b32 s75, {ST_OFF}")
    p(f"s_mov_b32 s48, 2\ns_mov_b32 s49, 3670016\ns_mov_b32 s50, 8192\ns_mov_b32 s51, 0")
    p(f"s_mov_b32 s7, 0x20000\ns_mov_b32 s10, {WS_SIZE}\ns_mov_b32 s11, 0x20000\ns_mov_b32 s14, 3584\ns_mov_b32 s15, 0x20000")
    p(f"s_lshl_b32 s{sW8K}, s{sW}, 13\ns_lshl_b32 s{sX}, s{sW}, 3")
    l = f"v{T0+1}"; g = f"v{T0+3}"; r = f"v{T0+4}"; t = f"v{T0+5}"; u = f"v{T0+6}"
    p(f"v_lshrrev_b32 {g}, 4, {l}\nv_and_b32 {r}, 15, {l}\nv_lshlrev_b32 v{VBIAS}, 3, {g}")
    p(f"v_lshrrev_b32 v{VROW}, 3, {l}\nv_add_u32 v{VROW}, s{sX}, v{VROW}")
    p(f"v_lshlrev_b32 {t}, 1, {g}\nv_and_b32 {u}, 7, {l}\nv_xor_b32 {t}, {t}, {u}\nv_lshlrev_b32 v{VCH}, 4, {t}")
    p("s_waitcnt lgkmcnt(0)")
    p(f"s_mov_b32 s{sSLOT}, 0\ns_mov_b32 s{sNEXT}, 0x8000")
    for x in setup_next_desc(D0) + setup_win(D0): p(x)
    for x in dma_ops('p'): p._e(x)
    for gq in range(7):
        for x in xn_loads(gq): p(x)
    for tok in ('d2', 'd1', 'd0'):
        for x in dma_ops(tok): p._e(x)
    p(f"s_mov_b32 s60, s76\ns_mov_b32 s61, s77\ns_mov_b32 s62, {name}_tab-L_{name}_pc\ns_mov_b32 s63, 0x20000\ns_mov_b32 s64, 0x8000")
    p(f"buffer_load_dword v128, v{T0+2}, s[60:63], 0 offen")
    p(f"buffer_load_dword v129, v{T0+2}, s[60:63], s64 offen")
    p(f"v_lshrrev_b32 {t}, 1, {g}\nv_lshlrev_b32 {t}, 13, {t}")
    p(f"v_and_b32 {u}, 1, {g}\nv_lshlrev_b32 v{T0+7}, 9, {u}\nv_add_u32 {t}, {t}, v{T0+7}")
    p(f"v_lshrrev_b32 v{T0+7}, 2, {r}\nv_lshlrev_b32 v{T0+7}, 7, v{T0+7}\nv_add_u32 {t}, {t}, v{T0+7}")
    p(f"v_and_b32 v{T0+7}, 3, {r}\nv_lshlrev_b32 v{T0+7}, 3, v{T0+7}\nv_add_u32 {t}, {t}, v{T0+7}")
    p(f"v_lshlrev_b32 {u}, 1, {u}\nv_lshrrev_b32 v{T0+7}, 3, {r}\nv_add_u32 {u}, {u}, v{T0+7}")
    for mt in range(4):
        p(f"v_xor_b32 v{T0+7}, {mt}, {u}\nv_lshlrev_b32 v{T0+7}, 5, v{T0+7}\nv_add_u32 v{LB+mt}, {t}, v{T0+7}\nv_mov_b32 v{AW+mt}, v{LB+mt}")
    p(f"v_mov_b32 v{NEG}, 0xf149f2ca\nv_lshlrev_b32 v{VSTAT}, 6, {r}")
    p(f"v_lshlrev_b32 {t}, 2, {g}")
    for i in range(4):
        p(f"v_add_u32 {u}, {i}, {t}\nv_cmp_gt_u32 s[{sMASK+2*i}:{sMASK+2*i+1}], {u}, {r}")
    p(f"s_mov_b32 s{sT}, {f2u(THRESH):#x}\ns_mov_b32 s{sC}, {f2u(1.4426950408889634/16):#x}")
    p.stamp(1)
    p("@need p " + " ".join(f"a{i}" for i in range(64, 176)) + " " + " ".join(f"v{i}" for i in range(96, 128)))
    p("s_barrier")
    for x in w_reads(0, 7): p(x)
    p.stamp(2)
    if stamps: p("s_waitcnt lgkmcnt(0)")

    l_piece = p.label("piece"); l_ffn = p.label("ffn"); l_out = p.label("outp"); l_fin = p.label("fin")
    p(f"{l_piece}:")
    p(f"s_mov_b32 s{sHS}, s{nHS}\ns_mov_b32 s{sTILE}, s{nTILE}")
    p(f"s_cmp_eq_u32 s{D0}, 1\ns_cbranch_scc1 {l_ffn}")

    def mask_check(sc, e, d):
        lo = p.label("mask"); lr = p.label("maskr")
        def blk():
            l2 = p.label("mall")
            p(f"{lo}:")
            p(f"s_cmp_eq_u32 s{sB}, s{sDIAG}\ns_cbranch_scc0 {l2}")
            for i in range(4):
                p(f"v_mov_b32 v{CI(1,0)+i}, v{NEG}")
                for kq in (0, 1):
                    p(f"v_cndmask_b32 v{CI(kq,kq)+i}, v{CI(kq,kq)+i}, v{NEG}, s[{sMASK+2*i}:{sMASK+2*i+1}]")
            p(f"s_branch {lr}")
            p(f"{l2}:")
            for i in range(16): p(f"v_mov_b32 v{48+i}, v{NEG}")
            p(f"s_branch {lr}")
        ool.append(blk)
        sc.stream([f"s_cmp_ge_u32 s{sB}, s{sDIAG}\ns_cbranch_scc1 {lo}\n{lr}:"], e, d)

    def xlane(op, x, a, b):
        return [f"v_mov_b32 v{a}, v{x}", f"v_mov_b32 v{b}, v{x}", f"v_permlane32_swap_b32 v{a}, v{b}", f"{op} v{x}, v{a}, v{b}",
                f"v_mov_b32 v{a}, v{x}", f"v_mov_b32 v{b}, v{x}", f"v_permlane16_swap_b32 v{a}, v{b}", f"{op} v{x}, v{a}, v{b}"]

    def inproj(sc, ffn):
        base = 0
        for e in range(8):
            G, kh = e >> 1, e & 1
            for nt in range(4):
                tb = base + nt * 14
                for qt in range(2):
                    for s in range(7):
                        d = rr('v', IA(G, nt, qt))
                        c = d
                        if kh == 0 and s == 0: c = rr('v', 32 + (nt & 1) * 4) if ffn else "0"
                        sc.mf.append(f"{MFMA} {d}, {rr('a', RING(nt, s))}, {rr('a', XF(kh, qt, s))}, {c}")
                if nt < 3:
                    sc.pre[tb] = ["@needlds"]
                    sc.stream(w_reads(nt + 1, 7), tb, tb + 9)
                if ffn and kh == 0:
                    b = BIAS + (G * 4 + nt) * 2; dd = 32 + (nt & 1) * 4
                    sc.stream([f"v_lshlrev_b32 v{dd}, 16, v{b}", f"v_and_b32 v{dd+1}, 0xffff0000, v{b}",
                               f"v_lshlrev_b32 v{dd+2}, 16, v{b+1}", f"v_and_b32 v{dd+3}, 0xffff0000, v{b+1}"], tb - 18, tb - 1 if tb > 0 else 0)
            tb = base + 42
            sc.pre[tb] = list(BAR)
            if e == 4:
                sc.stream(setup_wout(True) if ffn else setup_kv(), base + 9, tb)
            if e == 7 and not ffn:
                sc.stream([dict(t=f"v_add_u32 v{AK}, s{sNEXT}, v{L16}", d=tb + 1)] + k_reads(), tb, tb + 10)
                sc.stream(dma_ops(), tb + 1, base + 56)
            else:
                aw = aw_update()
                sc.stream(aw[:1] + w_reads(0, 8 if e == 7 else 7) + aw[1:], tb, tb + 10)
                sc.stream(dma_ops(), tb + 10, base + 56 + 8)
            if kh == 1:
                for pr in range(2):
                    ready = base + (2 * pr + 2) * 14 + 3
                    for qt in range(2):
                        ops = []
                        s = 2 * G + pr
                        for j in range(4):
                            a0 = IA(G, 2 * pr + (j >> 1), qt) + 2 * (j & 1)
                            if ffn:
                                ops += [f"v_mul_f32 v{a0}, v{a0}, abs(v{a0})", f"v_mul_f32 v{a0+1}, v{a0+1}, abs(v{a0+1})",
                                        f"v_cvt_pk_bf16_f32 v{a0}, v{a0}, v{a0+1}", f"v_pk_max_i16 v{OP(qt, s)+j}, v{a0}, 0"]
                            else:
                                ops += [f"v_mul_f32 v{a0}, s{sC}, v{a0}", f"v_mul_f32 v{a0+1}, s{sC}, v{a0+1}",
                                        f"v_cvt_pk_bf16_f32 v{a0}, v{a0}, v{a0+1}", f"v_accvgpr_write_b32 a{QF(qt, s)+j}, v{a0}"]
                        dl = base + 56 + 112 - 4
                        if G == 3: dl = (448 + s + 16 * qt - 1) if not ffn else 448
                        elif not ffn: dl = min(dl, 447)
                        sc.stream(ops, ready, dl)
            base += 56
        return base

    def softmax_streams(sc, b, qt, first):
        c0 = b + 16 * qt + 7 + 3; c1 = b + 16 * qt + 15 + 3; pv = b + 32 + 16 * qt - 1
        x = [S(0, qt) + i for i in range(4)] + [S(1, qt) + i for i in range(4)]
        mx = MX(qt)
        ops = [dict(t=f"v_max3_f32 v{mx}, v{x[0]}, v{x[1]}, v{x[2]}", e=c0)]
        if not first:
            ops += [dict(t=f"v_exp_f32 v{E(qt,k)}, v{x[k]}", e=c0) for k in range(4)]
        ops += [dict(t=f"v_max3_f32 v{mx}, v{mx}, v{x[3]}, v{x[4]}", e=c1), f"v_max3_f32 v{mx}, v{mx}, v{x[5]}, v{x[6]}", f"v_max_f32 v{mx}, v{mx}, v{x[7]}"]
        if first:
            ops += xlane("v_max_f32", mx, T0 + 2 * qt, T0 + 2 * qt + 1)
            for k in range(8):
                ops += [f"v_sub_f32 v{x[k]}, v{x[k]}, v{mx}", f"v_exp_f32 v{E(qt,k)}, v{x[k]}"]
        else:
            lo = p.label("rare"); lr = p.label("rarer")
            def blk(lo=lo, lr=lr):
                p(f"{lo}:")
                for o in xlane("v_max_f32", mx, T0, T0 + 1): p(o)
                p(f"v_max_f32 v{mx}, 0, v{mx}")
                p(f"v_sub_f32 v{T0}, 0, v{mx}\nv_exp_f32 v{T0}, v{T0}")
                p(f"v_add_f32 v{M(qt)}, v{M(qt)}, v{mx}")
                for k in range(8): p(f"v_sub_f32 v{x[k]}, v{x[k]}, v{mx}")
                for kt in range(2):
                    for i in range(4): p(f"v_sub_f32 v{CI(kt,qt)+i}, v{CI(kt,qt)+i}, v{mx}")
                for a in range(2): p(f"v_mul_f32 v{LS(qt,a)}, v{LS(qt,a)}, v{T0}")
                for i in range(64): p(f"v_mul_f32 v{O(0,qt)+i}, v{O(0,qt)+i}, v{T0}")
                for k in range(4): p(f"v_exp_f32 v{E(qt,k)}, v{x[k]}")
                p(f"s_nop 1\ns_branch {lr}")
            ool.append(blk)
            ops += [f"v_cmp_lt_f32 vcc, s{sT}, v{mx}", f"s_cbranch_vccnz {lo}\n{lr}:"]
            ops += [f"v_exp_f32 v{E(qt,k)}, v{x[k]}" for k in range(4, 8)]
        ops += [f"v_cvt_pk_bf16_f32 v{P(qt)+j}, v{E(qt,2*j)}, v{E(qt,2*j+1)}" for j in range(4)]
        late = []
        if first:
            late += [f"v_mov_b32 v{M(qt)}, v{mx}"]
            late += [f"v_sub_f32 v{CI(kt,qt)+i}, v{CI(kt,qt)+i}, v{mx}" for kt in range(2) for i in range(4)]
            late += [f"v_add_f32 v{LS(qt,a)}, v{E(qt,a)}, v{E(qt,2+a)}" for a in range(2)]
            late += [f"v_add_f32 v{LS(qt,k&1)}, v{LS(qt,k&1)}, v{E(qt,k)}" for k in range(4, 8)]
        else:
            late += [f"v_add_f32 v{LS(qt,k&1)}, v{LS(qt,k&1)}, v{E(qt,k)}" for k in range(8)]
        ops = [dict(t=o) if isinstance(o, str) else o for o in ops]
        for o in ops: o['d'] = pv
        return ops, late

    def attn_mf(first):
        mf = []
        for qt in range(2):
            for kt in range(2):
                for s in range(8):
                    d = rr('v', S(kt, qt))
                    mf.append(f"{MFMA} {d}, {rr('a', KF(kt, s))}, {rr('a', QF(qt, s))}, {rr('v', CI(kt, qt)) if s == 0 else d}")
        for qt in range(2):
            for dt in range(16):
                d = rr('v', O(dt, qt))
                mf.append(f"{MFMA} {d}, {rr('a', VF(dt))}, {rr('v', P(qt))}, {'0' if first else d}")
        return mf

    def wout_switch(sc, e, d):
        lo = p.label("sw"); lr = p.label("swr")
        def blk():
            p(f"{lo}:")
            for x in setup_wout(False): p(x)
            p(f"s_branch {lr}")
        ool.append(blk)
        sc.stream([f"s_cmp_eq_u32 s{sREM}, 4\ns_cbranch_scc1 {lo}\n{lr}:"], e, d)

    def attn_q123(sc, b, first):
        sc.pre[b] = ["@needlds"]
        sc.stream(v_reads(), b, b + 12)
        sc.pre[b + 32] = list(BAR)
        wout_switch(sc, b + 8, b + 32)
        o0, l0 = softmax_streams(sc, b, 0, first)
        o1, l1 = softmax_streams(sc, b, 1, first)
        sc.stream(o0 + [dict(t=x, d=b + 48) for x in l0])
        sc.stream(o1)
        sc.stream([f"v_add_u32 v{AK}, s{sNEXT}, v{L16}"] + aw_update()[:0], b + 32, b + 40)
        return l1

    sc = Sched(p)
    sc.stream([f"s_lshr_b32 s{sB}, s{D0+2}, 8", f"s_and_b32 s{sB}, s{sB}, 255", f"s_lshr_b32 s{sREM}, s{D0+2}, 16",
               f"s_lshl_b32 s{sDIAG}, s{sTILE}, 2", f"s_add_u32 s{sDIAG}, s{sDIAG}, s{sW}",
               f"s_mul_i32 s{sPART}, s{sHS}, {NSLOT_H}", f"s_add_u32 s{sPART}, s{sPART}, s{D0+3}", f"s_mul_i32 s{sPART}, s{sPART}, {PART_BYTES}",
               f"s_add_u32 s{sPART}, s{sPART}, {PA_OFF}",
               f"s_lshl_b32 s{sSTAT}, s{sDIAG}, 11", f"s_lshl_b32 s{sX}, s{sHS}, 2\ns_add_u32 s{sSTAT}, s{sSTAT}, s{sX}",
               f"s_cmp_ge_u32 s{D0+3}, 16\ns_cselect_b32 s{sX}, {ST_OFF + 262144}, s75\ns_add_u32 s{sSTAT}, s{sSTAT}, s{sX}"]
              + [f"v_mov_b32 v{48+i}, 0" for i in range(16)], 0, 100)
    mask_check(sc, 110, 440)
    b = inproj(sc, False)
    sc.mf += attn_mf(True)
    l1 = attn_q123(sc, b, True)
    sc.stream([dict(t=x, e=b + 47) for x in l1], b + 47, b + 60)
    sc.stream(k_reads(), b + 48, b + 58)
    sc.stream(dma_ops(), b + 41, b + 64)
    sc.stream([f"s_add_u32 s{sB}, s{sB}, 1", f"s_sub_u32 s{sREM}, s{sREM}, 1"], b + 33, b + 58)
    mask_check(sc, b + 61, b + 64)
    print("attn inproj+first over/left", sc.emit())
    p.stamp(3)
    l_loop = p.label("aloop"); l_last = p.label("alast")
    p(".p2align 6")
    p(f"{l_loop}:")
    mf = attn_mf(False)
    sc = Sched(p); sc.mf = mf[:48]
    l1 = attn_q123(sc, 0, False)
    d_all = dma_ops()
    sc.stream(d_all[:5], 41, 48)
    sc.stream([f"s_add_u32 s{sB}, s{sB}, 1", f"s_sub_u32 s{sREM}, s{sREM}, 1"], 33, 46)
    print("attn q123", sc.emit())
    p(f"s_cmp_eq_u32 s{sREM}, 0\ns_cbranch_scc1 {l_last}")
    sc = Sched(p); sc.mf = mf[48:]
    sc.stream(k_reads(), 0, 10)
    sc.stream(l1, 0, 16)
    sc.stream(d_all[5:], 0, 16)
    mask_check(sc, 4, 16)
    print("attn q4", sc.emit())
    p(f"s_branch {l_loop}")
    p(f"{l_last}:")
    sc = Sched(p); sc.mf = mf[48:]
    aw = aw_update()
    sc.stream(aw[:1] + w_reads(0, 8) + aw[1:], 0, 12)
    sc.stream(l1, 0, 16)
    sc.stream(d_all[5:], 12, 16)
    def opack(qt): return [f"v_cvt_pk_bf16_f32 v{OP(qt,s)+j}, v{O(2*s+(j>>1),qt)+2*(j&1)}, v{O(2*s+(j>>1),qt)+2*(j&1)+1}" for s in range(8) for j in range(4)]
    sc.stream(opack(0), 3)
    print("attn q4last", sc.emit())
    for qt in range(2): p(f"v_add_f32 v{LS(qt,0)}, v{LS(qt,0)}, v{LS(qt,1)}")
    x0 = xlane("v_add_f32", LS(0, 0), T0, T0 + 1); x1 = xlane("v_add_f32", LS(1, 0), T0 + 2, T0 + 3)
    for a_, b_ in zip(x0, x1): p(a_); p(b_)
    p(f"s_add_u32 s{sX}, s{sSTAT}, 131072")
    for qt in range(2):
        p(f"buffer_store_dword v{LS(qt,0)}, v{VSTAT}, s[8:11], s{sSTAT} offen offset:{qt*1024} {st_flags}")
        p(f"buffer_store_dword v{M(qt)}, v{VSTAT}, s[8:11], s{sX} offen offset:{qt*1024} {st_flags}")
    for x in opack(1): p(x)
    p.stamp(4)
    p(f"s_branch {l_out}")

    p(f"{l_ffn}:")
    sc = Sched(p)
    sc.stream([f"s_lshl_b32 s{sPART}, s{sHS}, 4", f"s_add_u32 s{sPART}, s{sPART}, s{sTILE}", f"s_mul_i32 s{sPART}, s{sPART}, {PART_BYTES}",
               f"s_add_u32 s{sPART}, s{sPART}, {PF_OFF}"], 0, 100)
    inproj(sc, True)
    print("ffn inproj", sc.emit())

    p(f"{l_out}:")
    sc = Sched(p)
    sc.stream([f"s_mul_i32 s{sY}, s{sW}, 28672\ns_add_u32 s{sPART}, s{sPART}, s{sY}"] + setup_next_desc(D1), 0, 20)
    base = 0
    for o in range(7):
        for mt in range(4):
            tb = base + mt * 16
            for qt in range(2):
                for s in range(8):
                    d = rr('v', OA(mt, qt))
                    sc.mf.append(f"{MFMA} {d}, {rr('a', RING(mt, s))}, {rr('v', OP(qt, s))}, {'0' if s == 0 else d}")
            if mt < 3:
                sc.pre[tb] = ["@needlds"]
                sc.stream(w_reads(mt + 1, 8), tb, tb + 10)
        tb = base + 48
        sc.pre[tb] = list(BAR)
        if o == 3: sc.stream(setup_win(D1), base + 9, tb)
        aw = aw_update()
        sc.stream(aw[:1] + w_reads(0, 7 if o == 6 else 8) + aw[1:], tb, tb + 11)
        sc.stream(dma_ops(), tb + 11, base + 64 + 8)
        sc.stream(xn_loads(o), base + 24, base + 48)
        for pr in range(2):
            ready = base + (2 * pr + 2) * 16 + 3
            ops = []
            for qt in range(2):
                tmp = 72 + pr * 8 + qt * 4
                for j in range(4):
                    a0 = OA(2 * pr + (j >> 1), qt) + 2 * (j & 1)
                    ops.append(f"v_cvt_pk_bf16_f32 v{tmp+j}, v{a0}, v{a0+1}")
                ops.append(f"s_add_u32 s3, s{sPART}, {qt*14336 + (2*o+pr)*1024}\nbuffer_store_dwordx4 {rr('v', tmp)}, v{L16}, s[8:11], s3 offen {st_flags}")
            sc.stream(ops, ready, base + 64 + pr * 32 - 4)
        base += 64
    print("outproj", sc.emit())
    p.stamp(5)
    for i in range(0, 16, 2): p(f"s_mov_b64 s[{32+i}:{33+i}], s[{36+i}:{37+i}]")
    p(f"s_cmp_lg_u32 s{D0}, 2\ns_cbranch_scc1 {l_piece}")
    if stamps: p("s_waitcnt vmcnt(0)")
    p.stamp(6)
    p.stamp_flush(7, "s[8:11]", f"s{sW}", STAMP_OFF + 65536, tv=(T0, T0 + 1))
    p(f"{end}:")
    p("s_endpgm")
    k = 0
    while k < len(ool):
        ool[k](); k += 1
    code = p.finish()
    tab = f".p2align 6\n.type {name}_tab,@object\n{name}_tab:\n" + "\n".join(".long " + ", ".join(str(x) for x in e) for e in sched_tab.table()) + f"\n.size {name}_tab, {32*64}\n"
    return code + tab, desc(name)
```

```python
from asmlib import *
from layout import *
def rr(f, b, n=4): return f"{f}[{b}:{b+n-1}]"

def gen_k3(name="k3_kernel", ld_flags="", stamps=False):
    p = Prog(name); p.stamps_on = stamps
    end = p.label("end")
    X, B2, L, M, L2, M2, MAIN, SEC, FF, AS, AO, T = 8, 12, 16, 32, 48, 64, 80, 144, 208, 236, 244, 252
    p(f"s_cmp_ge_u32 s2, 448\ns_cbranch_scc1 {end}")
    p.stamp(0)
    p(f"s_load_dwordx2 s[4:5], s[0:1], {A_X}\ns_load_dwordx2 s[8:9], s[0:1], {WS}\ns_load_dwordx4 s[20:23], s[0:1], {B_B2}")
    p("v_lshrrev_b32 v1, 6, v0\nv_and_b32 v2, 63, v0")
    p("v_readfirstlane_b32 s24, v1")
    p("v_lshlrev_b32 v3, 4, v2\nv_and_b32 v4, 15, v2\nv_lshrrev_b32 v5, 4, v2")
    p("s_lshl_b32 s25, s2, 2\ns_add_u32 s25, s25, s24")
    p("s_mul_hi_u32 s26, s25, 306783379\ns_mul_i32 s27, s26, 14\ns_sub_u32 s27, s25, s27")
    p("s_lshr_b32 s28, s26, 3\ns_and_b32 s29, s26, 7")
    p("s_mul_i32 s29, s29, 14\ns_add_u32 s29, s29, s27\ns_lshl_b32 s29, s29, 10")
    p(f"s_mul_i32 s30, s28, {PART_BYTES}\ns_add_u32 s30, s30, s29")
    p(f"s_add_u32 s31, s30, {PF_OFF}\ns_add_u32 s30, s30, {PA_OFF}")
    p(f"s_lshl_b32 s32, s26, 10\ns_add_u32 s32, s32, {ST_OFF}")
    p("v_lshlrev_b32 v6, 6, v4")
    p("v_lshlrev_b32 v5, 3, v5\nv_mul_u32_u24 v7, 896, v4\nv_add_u32 v7, v7, v5")
    p("s_mul_i32 s33, s26, 14336\ns_lshl_b32 s34, s27, 6\ns_add_u32 s33, s33, s34")
    p("s_waitcnt lgkmcnt(0)")
    p("s_mov_b32 s6, 1835008\ns_mov_b32 s7, 0x20000")
    p(f"s_mov_b32 s10, {WS_SIZE}\ns_mov_b32 s11, 0x20000")
    p("s_mov_b32 s12, s20\ns_mov_b32 s13, s21\ns_mov_b32 s14, 896\ns_mov_b32 s15, 0x20000")
    p("s_mov_b32 s16, s22\ns_mov_b32 s17, s23\ns_mov_b32 s18, 1835008\ns_mov_b32 s19, 0x20000")
    lsplit = p.label("split")
    p(f"s_cmp_ge_u32 s28, 11\ns_cbranch_scc1 {lsplit}")
    for split in (0, 1):
        if split: p(f"{lsplit}:")
        for k, base in enumerate((L, M, L2, M2) if split else (L,)):
            if k: p(f"s_add_u32 s35, s32, {k*131072}")
            for j in range(4):
                p(f"buffer_load_dwordx4 {rr('v', base+4*j)}, v6, s[8:11], {'s35' if k else 's32'} offen offset:{16*j} {ld_flags}")
        for sl in range(7):
            p(f"s_add_u32 s35, s31, {sl*16*PART_BYTES}")
            p(f"buffer_load_dwordx4 {rr('v', FF+4*sl)}, v3, s[8:11], s35 offen {ld_flags}")
        p(f"buffer_load_dwordx2 v[{B2}:{B2+1}], v5, s[12:15], s34 offen\nbuffer_load_dwordx2 v[{B2+2}:{B2+3}], v5, s[12:15], s34 offen offset:32")
        p(f"buffer_load_dwordx2 v[{X}:{X+1}], v7, s[4:7], s33 offen\nbuffer_load_dwordx2 v[{X+2}:{X+3}], v7, s[4:7], s33 offen offset:32")
        for h in range(16):
            p(f"s_add_u32 s35, s30, {h*NSLOT_H*PART_BYTES}")
            p(f"buffer_load_dwordx4 {rr('v', MAIN+4*h)}, v3, s[8:11], s35 offen {ld_flags}")
        if split:
            for h in range(16):
                p(f"s_add_u32 s35, s30, {(h*NSLOT_H+5)*PART_BYTES}")
                p(f"buffer_load_dwordx4 {rr('v', SEC+4*h)}, v3, s[8:11], s35 offen {ld_flags}")
        for h in range(16):
            if not split:
                p(f"v_rcp_f32 v{L+h}, v{L+h}")
            else:
                p(f"v_max_f32 v{T}, v{M+h}, v{M2+h}")
                p(f"v_sub_f32 v{M+h}, v{M+h}, v{T}\nv_sub_f32 v{M2+h}, v{M2+h}, v{T}")
                p(f"v_exp_f32 v{M+h}, v{M+h}\nv_exp_f32 v{M2+h}, v{M2+h}")
                p(f"v_mul_f32 v{T}, v{L+h}, v{M+h}\nv_fmac_f32 v{T}, v{L2+h}, v{M2+h}")
                p(f"v_rcp_f32 v{T}, v{T}")
                p(f"v_mul_f32 v{L+h}, v{M+h}, v{T}\nv_mul_f32 v{L2+h}, v{M2+h}, v{T}")
        for sl in range(7):
            for j in range(4):
                s = FF + 4 * sl + j; a = AO + 2 * j
                if sl == 0:
                    p(f"v_lshlrev_b32 v{a}, 16, v{s}\nv_and_b32 v{a+1}, 0xffff0000, v{s}")
                else:
                    t = T + 2 * (j & 1)
                    p(f"v_lshlrev_b32 v{t}, 16, v{s}\nv_and_b32 v{t+1}, 0xffff0000, v{s}")
                    p(f"v_pk_add_f32 v[{a}:{a+1}], v[{a}:{a+1}], v[{t}:{t+1}]")
        for j in range(4):
            a = AO + 2 * j
            p(f"v_cvt_pk_bf16_f32 v{T}, v{a}, v{a+1}")
            p(f"v_lshlrev_b32 v{a}, 16, v{T}\nv_and_b32 v{a+1}, 0xffff0000, v{T}")
            p(f"v_lshlrev_b32 v{T}, 16, v{B2+j}\nv_and_b32 v{T+1}, 0xffff0000, v{B2+j}")
            p(f"v_add_f32 v{a}, v{a}, v{T}\nv_add_f32 v{a+1}, v{a+1}, v{T+1}")
            p(f"v_cvt_pk_bf16_f32 v{T}, v{a}, v{a+1}")
            p(f"v_lshlrev_b32 v{a}, 16, v{T}\nv_and_b32 v{a+1}, 0xffff0000, v{T}")
            for e in range(2):
                p(f"v_mul_f32 v{T+e}, 0xbfb8aa3b, v{a+e}\nv_exp_f32 v{T+e}, v{T+e}")
            for e in range(2):
                p(f"v_add_f32 v{T+e}, 1.0, v{T+e}\nv_rcp_f32 v{T+e}, v{T+e}")
            for e in range(2):
                p(f"v_mul_f32 v{a+e}, v{a+e}, v{T+e}")
            p(f"v_cvt_pk_bf16_f32 v{T}, v{a}, v{a+1}")
            p(f"v_lshlrev_b32 v{a}, 16, v{T}\nv_and_b32 v{a+1}, 0xffff0000, v{T}")
        first = True
        for (base, wb) in ((MAIN, L), (SEC, L2)) if split else ((MAIN, L),):
            for h in range(16):
                for j in range(4):
                    s = base + 4 * h + j; a = AS + 2 * j; t = T + 2 * (j & 1)
                    p(f"v_lshlrev_b32 v{t}, 16, v{s}\nv_and_b32 v{t+1}, 0xffff0000, v{s}")
                    if first:
                        p(f"v_mul_f32 v{a}, v{t}, v{wb+h}\nv_mul_f32 v{a+1}, v{t+1}, v{wb+h}")
                    else:
                        p(f"v_fmac_f32 v{a}, v{t}, v{wb+h}\nv_fmac_f32 v{a+1}, v{t+1}, v{wb+h}")
                first = False
        for j in range(4):
            a = AS + 2 * j; o = AO + 2 * j
            p(f"v_cvt_pk_bf16_f32 v{T}, v{a}, v{a+1}")
            p(f"v_lshlrev_b32 v{a}, 16, v{T}\nv_and_b32 v{a+1}, 0xffff0000, v{T}")
            p(f"v_mul_f32 v{a}, v{a}, v{o}\nv_mul_f32 v{a+1}, v{a+1}, v{o+1}")
            p(f"v_cvt_pk_bf16_f32 v{T}, v{a}, v{a+1}")
            p(f"v_lshlrev_b32 v{a}, 16, v{T}\nv_and_b32 v{a+1}, 0xffff0000, v{T}")
            p(f"v_lshlrev_b32 v{T}, 16, v{X+j}\nv_and_b32 v{T+1}, 0xffff0000, v{X+j}")
            p(f"v_add_f32 v{a}, v{a}, v{T}\nv_add_f32 v{a+1}, v{a+1}, v{T+1}")
            p(f"v_cvt_pk_bf16_f32 v{X+j}, v{a}, v{a+1}")
        p(f"buffer_store_dwordx2 v[{X}:{X+1}], v7, s[16:19], s33 offen\nbuffer_store_dwordx2 v[{X+2}:{X+3}], v7, s[16:19], s33 offen offset:32")
        if stamps: p("s_waitcnt vmcnt(0)")
        p.stamp(1)
        p.stamp_flush(2, "s[8:11]", "s24", STAMP_OFF + 131072)
        p("s_endpgm")
    p(f"{end}:")
    p("s_endpgm")
    return p.finish(), desc(name, vg=256, acc=256)
```

```python
KV_OFF = 0
XN_OFF = 32 << 20
ST_OFF = 34 << 20
PA_OFF = 36 << 20
PART_BYTES = 114688
NSLOT_H = 21
PF_OFF = PA_OFF + 16 * NSLOT_H * PART_BYTES
WS_END = PF_OFF + 112 * PART_BYTES
WS_SIZE = 128 << 20
assert WS_END <= WS_SIZE
A_X, A_C, A_WQ, A_WUK, A_WUV, A_WO, B_X, B_W1, B_B1, B_W2, B_B2, OUT, DBG, WS = [8 * i for i in range(14)]
MFMA = "v_mfma_f32_16x16x32_bf16"
STAMP_OFF = 120 << 20
```

```python
BIGS = {11: 44, 12: 46, 13: 46, 14: 46, 15: 46}
def bins():
    A = lambda i: ('A', i, 0, 4 * (i + 1), i)
    big = lambda i: ('A', i, 4 * (i + 1) - BIGS[i], BIGS[i], i)
    rem = lambda i: ('A', i, 0, 4 * (i + 1) - BIGS[i], 16 + i - 11)
    F = ('F',)
    return [
        [A(10)], [A(9)], [A(8)],
        [F, A(7)], [A(0), A(6)], [A(1), A(5)], [A(2), A(4)], [F, F, A(3)],
        [big(11)], [big(12)], [big(13)], [big(14)], [big(15)],
        [rem(14), rem(15)], [F, rem(12), rem(13)], [F, F, F, rem(11)],
    ]
def cost(b): return sum(14 + (x[3] if x[0] == 'A' else 0) for x in b)
def table():
    out = []
    nf = 0
    for idx in range(32):
        hsel, bi = idx & 1, idx >> 1
        e = []
        for x in bins()[bi]:
            if x[0] == 'A': e += [0, hsel, x[1] | (x[2] << 8) | (x[3] << 16), x[4]]
            else: e += [1, nf, 0, 0]; nf += 1
        while len(e) < 16: e += [2, 0, 0, 0]
        out.append(e)
    assert nf == 14
    return out
if __name__ == "__main__":
    print([cost(b) for b in bins()], sum(cost(b) for b in bins()))
```

```python
import sys
sys.path.insert(0, "gen")
from k1 import gen_k1
from k2 import gen_k2
from k3 import gen_k3
NAME = "recurrent_scan__compressed_kv_cla__dense_activation_squared_relu__prompt"
HDR = open(f"cdna_kernels/{NAME}.s.ref").read().split("; Override")[0]
def build(path, kernels):
    o = [HDR.rstrip()]
    for k in kernels: o.append(f"; @launch kernel={k[0]} grid=({k[3]},1,1) block=({k[4]},1,1) lds={k[5]}")
    o.append('.amdgcn_target "amdgcn-amd-amdhsa--gfx950"\n.text')
    for k in kernels: o.append(k[1])
    o.append('.section .rodata,"a"')
    for k in kernels: o.append(k[2])
    open(path, "w").write("\n".join(o) + "\n")
def all3(path, stamps, **kw):
    ks = []
    c, d = gen_k1(stamps=stamps, **kw.get('k1', {})); ks.append(("k1_kernel", c, d, 256, 256, 131072))
    c, d = gen_k2(stamps=stamps, **kw.get('k2', {})); ks.append(("k2_kernel", c, d, 256, 256, 131072))
    c, d = gen_k3(stamps=stamps, **kw.get('k3', {})); ks.append(("k3_kernel", c, d, 448, 256, 0))
    build(path, ks)
if __name__ == "__main__":
    all3("t2.s", True)
    all3(f"cdna_kernels/{NAME}.s", False)
```
